```python
import torch

def _softmax(x, axis=-1):
    return torch.softmax(x, dim=axis)
def _gelu(x):
    return torch.nn.functional.gelu(x, approximate="tanh")
def _silu(x):
    return torch.nn.functional.silu(x)
def _sigmoid(x):
    return torch.sigmoid(x)
def _layernorm(x, axis=-1, eps=1e-5):
    m = x.mean(dim=axis, keepdim=True)
    v = x.var(dim=axis, keepdim=True, unbiased=False)
    return (x - m) / torch.sqrt(v + eps)
def _scatter_add(tgt, idx, src, axis=0):
    return tgt.clone().index_add_(axis, idx, src)
def _segment_sum(src, seg, n):
    out = torch.zeros((n,) + src.shape[1:], dtype=src.dtype)
    return out.index_add_(0, seg, src)
def _pad(x, pw):
    flat = tuple(v for pair in reversed(pw) for v in pair)
    return torch.nn.functional.pad(x, flat)

kernel_name = 'standalone__mha_softmax__near_ridge'

def setup_inputs():

    _w = (lambda a: (lambda t: t.to(torch.bfloat16) if t.is_floating_point() else t)(torch.as_tensor(a)))
    B, H, Sq, Sk, D = 16, 32, 496, 512, 128
    return {
        "q": _w((lambda *s: torch.randn(*s, dtype=torch.bfloat16) * 0.8)(B, H, Sq, D)),
        "k": _w((lambda *s: torch.randn(*s, dtype=torch.bfloat16) * 0.8)(B, H, Sk, D)),
        "v": _w((lambda *s: torch.randn(*s, dtype=torch.bfloat16) * 0.05)(B, H, Sk, D)),
    }

def reference(q, k, v):
    scale = q.shape[-1] ** -0.5
    scores = torch.einsum("bhqd,bhkd->bhqk", q, k) * scale
    p = _softmax(scores, axis=-1)
    return torch.einsum("bhqk,bhkd->bhqd", p, v)
```

```python
import re

class Inst:
    __slots__ = ("text", "kind", "cost", "rd", "wr", "tag", "need", "seq", "preds", "succs", "deadline",
                 "done", "t_issue", "front", "meta", "release")
    def __init__(self, text, kind, rd=(), wr=(), cost=None, tag=None, need=None, front=False, meta=None):
        self.text = text
        self.kind = kind
        self.rd = frozenset(rd)
        self.wr = frozenset(wr)
        if cost is None:
            cost = {"mfma": 8, "valu": 4, "trans": 8, "ds": 4, "vmem": 4, "salu": 4, "wait": 4, "barrier": 4,
                    "nop": 4, "branch": 4, "label": 0, "comment": 0}[kind]
        self.cost = cost
        self.tag = tag
        self.need = need
        self.front = front
        self.meta = meta or {}
        self.seq = None
        self.preds = []
        self.succs = []
        self.deadline = None
        self.done = False
        self.t_issue = None
        self.release = None
    def __repr__(self):
        return "<%s>" % self.text

def R(bank, lo, n=1):
    return [(bank, lo + i) for i in range(n)]
def rs(bank, lo, n=1):
    if n == 1: return "%s%d" % (bank, lo)
    return "%s[%d:%d]" % (bank, lo, lo + n - 1)

def mfma(d, a, b, c=None, meta=None):
    rd = R(a[0], a[1], 4) + R(b[0], b[1], 4)
    if c is None:
        rd += R(d[0], d[1], 16); cs = rs(d[0], d[1], 16)
    else:
        cs = "0"
    return Inst("v_mfma_f32_32x32x16_bf16 %s, %s, %s, %s" % (rs(d[0], d[1], 16), rs(a[0], a[1], 4), rs(b[0], b[1], 4), cs),
                "mfma", rd, R(d[0], d[1], 16), meta=meta)

def valu(op, dst, srcs, kind="valu", extra="", meta=None, wr_extra=(), rd_extra=()):
    def fmt(x):
        if isinstance(x, tuple):
            return rs(x[0], x[1], x[2] if len(x) > 2 else 1)
        return str(x)
    def regs(x):
        if isinstance(x, tuple):
            return R(x[0], x[1], x[2] if len(x) > 2 else 1)
        if x == "vcc": return [("s", "vcc")]
        if x == "m0": return [("s", "m0")]
        return []
    rd = [r for s in srcs for r in regs(s)] + list(rd_extra)
    wr = regs(dst) + list(wr_extra)
    txt = "%s %s" % (op, ", ".join([fmt(dst)] + [fmt(s) for s in srcs]))
    if extra: txt += " " + extra
    return Inst(txt, kind, rd, wr, meta=meta)

def salu(op, dst, srcs, meta=None, scc_w=True, scc_r=False):
    i = valu(op, dst, srcs, kind="salu", meta=meta) if dst is not None else None
    if i is None:
        def fmt(x):
            if isinstance(x, tuple): return rs(x[0], x[1], x[2] if len(x) > 2 else 1)
            return str(x)
        rd = []
        for s in srcs:
            if isinstance(s, tuple): rd += R(s[0], s[1], s[2] if len(s) > 2 else 1)
            elif s == "vcc": rd.append(("s", "vcc"))
        i = Inst("%s %s" % (op, ", ".join(fmt(s) for s in srcs)), "salu", rd, [], meta=meta)
    if scc_w: i.wr = i.wr | {("s", "scc")}
    if scc_r: i.rd = i.rd | {("s", "scc")}
    return i

def ds_read(dst, n, addr, offset, tr=False, meta=None):
    op = "ds_read_b64_tr_b16" if tr else {4: "ds_read_b128", 1: "ds_read_b32", 2: "ds_read_b64"}[n]
    return Inst("%s %s, v%d offset:%d" % (op, rs(dst[0], dst[1], n), addr, offset), "ds", [("v", addr)], R(dst[0], dst[1], n),
                meta=meta, front=True)

def dma(voff, srd, soff, offset, tag, extra=""):
    so = "s%d" % soff if soff is not None else "0"
    rd = [("v", voff), ("s", "m0")] + R("s", srd, 4) + ([("s", soff)] if soff is not None else [])
    return Inst("buffer_load_dwordx4 v%d, s[%d:%d], %s offen offset:%d%s lds" % (voff, srd, srd + 3, so, offset, extra), "vmem", rd, [],
                tag=tag, front=True, meta={"dma": True})

def gload(dst, voff, srd, offset, tag, soff=None, extra=""):
    so = "s%d" % soff if soff is not None else "0"
    rd = [("v", voff)] + R("s", srd, 4) + ([("s", soff)] if soff is not None else [])
    return Inst("buffer_load_dwordx4 %s, v%d, s[%d:%d], %s offen offset:%d%s" % (rs(dst[0], dst[1], 4), voff, srd, srd + 3, so, offset, extra),
                "vmem", rd, R(dst[0], dst[1], 4), tag=tag, front=True, meta={"load": True})

def gstore(src, voff, srd, offset, tag, cost=8, extra=""):
    rd = [("v", voff)] + R("s", srd, 4) + R(src[0], src[1], 4)
    return Inst("buffer_store_dwordx4 %s, v%d, s[%d:%d], 0 offen offset:%d%s" % (rs(src[0], src[1], 4), voff, srd, srd + 3, offset, extra),
                "vmem", rd, [], tag=tag, front=True, cost=cost, meta={"store": True, "data": R(src[0], src[1], 4)})

def wait(vm=None, lgkm=None):
    return Inst("s_waitcnt ?", "wait", need={"vm": vm, "lgkm": lgkm})
def barrier():
    return Inst("s_barrier", "barrier")
def nop(n=0):
    return Inst("s_nop %d" % n, "nop", cost=4 * 1 if n == 0 else 4 + n, meta={"ws": n + 1})
def raw(text, kind="salu", rd=(), wr=(), cost=None, meta=None):
    return Inst(text, kind, rd, wr, cost=cost, meta=meta)
def label(name):
    return Inst(name + ":", "label")
def comment(t):
    return Inst("; " + t, "comment")

LAT_VALU = 8
LAT_TRANS = 16
LAT_MFMA = 72
LAT_V2M = 12

def build_deps(ops):
    lastw = {}; readers = {}
    for i, o in enumerate(ops):
        o.seq = i; o.preds = []; o.succs = []
    for o in ops:
        pr = {}
        def add(p, lat):
            if p is o: return
            if pr.get(p, -1) < lat: pr[p] = lat
        for r in o.rd:
            p = lastw.get(r)
            if p is not None:
                if p.kind == "mfma":
                    lat = 0 if (o.kind == "mfma" and r in o.wr) else LAT_MFMA
                elif p.kind == "trans": lat = LAT_TRANS
                elif p.kind == "valu": lat = LAT_V2M if o.kind == "mfma" else LAT_VALU
                elif p.kind == "ds": lat = 0
                elif p.kind == "vmem": lat = 0
                else: lat = 4
                add(p, lat)
        for r in o.wr:
            p = lastw.get(r)
            if p is not None:
                lat = 0
                if p.kind == "mfma" and o.kind != "mfma": lat = LAT_MFMA
                add(p, lat)
            for p in readers.get(r, ()):
                lat = 0
                if p.kind == "vmem" and p.meta.get("store"): lat = 12
                add(p, lat)
        for e in o.meta.get("after", ()):
            add(e[0], e[1])
        o.preds = list(pr.items())
        for p in pr: p.succs.append(o)
        for r in o.rd: readers.setdefault(r, []).append(o)
        for r in o.wr:
            lastw[r] = o; readers[r] = []

def compute_deadlines(ops, backbone_index):
    INF = 10 ** 9
    for o in reversed(ops):
        if o in backbone_index:
            o.deadline = backbone_index[o]
        else:
            d = INF
            for s in o.succs:
                if s.deadline is not None and s.deadline < d: d = s.deadline
            dl = o.meta.get("deadline")
            if dl is not None and dl < d: d = dl
            o.deadline = d
```

```python
from core import *

class Region:
    def __init__(self, name):
        self.name = name
        self.backbone = []
        self.front = {}
        self.end = {}
        self.pre = []
        self.seq = []
    def add(self, o):
        self.seq.append(o); return o
    def bb(self, o):
        self.backbone.append(o); self.seq.append(o); return len(self.backbone) - 1
    def fix_front(self, gap, o, add_seq=True):
        self.front.setdefault(gap, []).append(o)
        if add_seq: self.seq.append(o)
        return o
    def fix_end(self, gap, o, add_seq=True):
        self.end.setdefault(gap, []).append(o)
        if add_seq: self.seq.append(o)
        return o

DS_SAFE_GAPS = 4

def plan_lgkm_waits(reg, pending_in=None):
    pend = [(o, -100) for o in (pending_in or [])]
    for o in reg.pre:
        if o.kind == "ds": pend.append((o, -1 - 0))
        if o.kind == "wait" and o.need.get("lgkm") == 0: pend = []
    for i, m in enumerate(reg.backbone):
        need = -1
        for k, (o, g) in enumerate(pend):
            if o.wr & m.rd: need = k
        if need >= 0:
            k = need
            while k + 1 < len(pend) and pend[k + 1][1] <= i - DS_SAFE_GAPS: k += 1
            n = len(pend) - 1 - k
            n = min(n, 15)
            w = Inst("s_waitcnt lgkmcnt(%d)" % n, "wait", need={"vm": None, "lgkm": n})
            if i == 0: reg.pre.append(w)
            else:
                merged = False
                for e in reg.end.get(i - 1, []):
                    if e.kind == "wait" and e.need.get("lgkm") is None:
                        e.need["lgkm"] = n; merged = True
                if not merged: reg.end.setdefault(i - 1, []).append(w)
            pend = pend[len(pend) - n:] if n > 0 else []
        for o in reg.front.get(i, []):
            if o.kind == "ds": pend.append((o, i))
            if o.kind == "wait" and o.need.get("lgkm") is not None:
                if o.need["lgkm"] == "auto":
                    k = -1
                    while k + 1 < len(pend) and pend[k + 1][1] <= i - DS_SAFE_GAPS: k += 1
                    n = min(len(pend) - 1 - k, 15)
                    o.need["lgkm"] = n
                n = o.need["lgkm"]
                pend = pend[max(0, len(pend) - n):] if n > 0 else []
        for o in reg.end.get(i, []):
            if o.kind == "wait" and o.need.get("lgkm") is not None and o.need["lgkm"] != "auto":
                n = o.need["lgkm"]
                pend = pend[max(0, len(pend) - n):] if n > 0 else []
    return [o for o, g in pend]

def schedule(reg, skip_keys=(), gap_cap=24, mfma_period=32, cut=None, verbose=False, flush=True):
    ops = [o for o in reg.seq if o.meta.get("key") not in skip_keys or o.meta.get("key") is None]
    skipped = set(id(o) for o in reg.seq) - set(id(o) for o in ops)
    build_deps(ops)
    bbidx = {m: i for i, m in enumerate(reg.backbone)}
    fixedpos = {}
    for g, l in reg.front.items():
        for o in l: fixedpos[o] = g + 0.25
    for g, l in reg.end.items():
        for o in l: fixedpos[o] = g + 0.75
    for o in reg.pre: fixedpos[o] = -0.5
    allidx = dict(bbidx); allidx.update(fixedpos)
    compute_deadlines(ops, allidx)
    for o in ops: o.done = False; o.t_issue = None
    out = []
    st = {"t": 0, "last_mfma": -10 ** 6, "n": 0}
    fixedset = set(fixedpos) | set(bbidx)
    floaters = [o for o in ops if o not in fixedset]
    remaining = set(floaters)
    cand = sorted(floaters, key=lambda o: (o.deadline, o.seq))
    emitted_keys = set()
    def ready_time(o):
        t = 0
        for p, lat in o.preds:
            if not p.done: return None
            t = max(t, p.t_issue + lat)
            ws = required_ws(p, o)
            if ws:
                have = st["n"] - p.meta["_n"] - 1
                if have < ws: t = max(t, st["t"] + 4 * (ws - have))
        return t
    def emit(o):
        if o.kind == "mfma":
            st["t"] = max(st["t"], st["last_mfma"] + mfma_period)
            st["last_mfma"] = st["t"]
        o.t_issue = st["t"]; o.done = True
        o.meta["_n"] = st["n"]; st["n"] += nlines(o)
        if nlines(o) > 1: o.meta["_n"] = st["n"] - 1
        st["t"] += o.cost
        out.append(o)
        remaining.discard(o)
        k = o.meta.get("key")
        if k is not None: emitted_keys.add(k)
    def force_preds(o):
        need = set(); stack = [o]
        while stack:
            x = stack.pop()
            for p, lat in x.preds:
                if not p.done and p not in need:
                    if p in fixedset:
                        raise Exception("forced pred is a fixed op not yet emitted: %s needed by %s (root %s)" % (p, x, o))
                    need.add(p); stack.append(p)
        n = len(need)
        while need:
            best = None; bt = None
            for x in sorted(need, key=lambda z: (z.deadline, z.seq)):
                rt = ready_time(x)
                if rt is None: continue
                if rt <= st["t"]:
                    best = x; break
                if bt is None or rt < bt[0]: bt = (rt, x)
            if best is None:
                other = None
                for x in cand:
                    if x.done or x in need: continue
                    rt = ready_time(x)
                    if rt is not None and rt <= st["t"] and not x.front and x.cost <= bt[0] - st["t"] + 3 and allowed(x):
                        other = x; break
                if other is not None:
                    emit(other); continue
                st["t"] = bt[0]; best = bt[1]
            emit(best); need.discard(best)
        return n
    cur_gap = [-1]
    def allowed(x):
        r = x.meta.get("min_gap")
        return r is None or cur_gap[0] >= r
    def emit_fixed(o):
        force_preds(o)
        rt = ready_time(o)
        if rt is not None and rt > st["t"] and o.kind == "mfma":
            while True:
                other = None
                for x in cand:
                    if x.done: continue
                    r2 = ready_time(x)
                    if r2 is not None and r2 <= st["t"] and not x.front and st["t"] + x.cost <= rt + 3 and allowed(x):
                        other = x; break
                if other is None: break
                emit(other)
            st["t"] = max(st["t"], rt)
        emit(o)
    for o in reg.pre:
        if o.meta.get("fill"):
            lim = st["t"] + o.meta["fill"]
            while True:
                pick = None
                for x in cand:
                    if x.done or x.front or st["t"] + x.cost > lim: continue
                    rt = ready_time(x)
                    if rt is not None and rt <= st["t"]: pick = x; break
                if pick is None: break
                emit(pick)
            o.done = True; o.t_issue = st["t"]; o.meta["_n"] = st["n"]
            continue
        emit_fixed(o)
    overflow = []
    cuts = {}
    nb = len(reg.backbone)
    for i, m in enumerate(reg.backbone):
        emit_fixed(m)
        cur_gap[0] = i
        t0 = m.t_issue
        for o in reg.front.get(i, []): emit_fixed(o)
        endcost = sum(o.cost for o in reg.end.get(i, []))
        limit = t0 + mfma_period - endcost
        for x in cand:
            if x.done or not x.front: continue
            rt = ready_time(x)
            if rt is not None and rt <= st["t"] and allowed(x):
                emit(x); break
        while True:
            pick = None
            for x in cand:
                if x.done or x.front: continue
                if not allowed(x): continue
                if st["t"] + x.cost > limit: continue
                rt = ready_time(x)
                if rt is not None and rt <= st["t"]:
                    pick = x; break
            if pick is None:
                nxt = None
                for x in cand:
                    if x.done or x.front or not allowed(x): continue
                    rt = ready_time(x)
                    if rt is not None and rt > st["t"] and rt + x.cost <= limit:
                        if nxt is None or rt < nxt[0]: nxt = (rt, x)
                if nxt is None: break
                st["t"] = nxt[0]
                continue
            emit(pick)
        for o in reg.end.get(i, []): emit_fixed(o)
        cand = [x for x in cand if not x.done]
        if cut is not None and i in cut:
            cuts[i] = (len(out), set(emitted_keys))
        if st["t"] > t0 + mfma_period: overflow.append((i, st["t"] - t0))
    if flush:
        cur_gap[0] = 10 ** 6
        while remaining:
            best = None; bt = None
            for x in cand:
                if x.done: continue
                rt = ready_time(x)
                if rt is None: continue
                if rt <= st["t"]: best = x; break
                if bt is None or rt < bt[0]: bt = (rt, x)
            if best is None:
                st["t"] = bt[0]; best = bt[1]
            emit(best)
    info = {"mt": [m.t_issue for m in reg.backbone], "t": st["t"], "overflow": overflow, "cuts": cuts, "keys": emitted_keys}
    return out, info

def nlines(o):
    if o.kind in ("label", "comment"): return 0
    if o.kind == "nop": return o.meta.get("ws", 1)
    return o.text.count("\n") + 1

def is_valu(o): return o.kind in ("valu", "trans")

def required_ws(prev, o):
    w = 0
    if prev.kind == "mfma":
        d = prev.wr
        if o.kind == "mfma":
            if (o.rd & d):
                if o.wr == d and not ((o.meta.get("ab", frozenset())) & d): w = max(w, 0)
                else: w = max(w, 12)
            elif o.wr & d: w = max(w, 0 if o.wr == d else 10)
        elif (o.rd | o.wr) & d: w = max(w, 12)
    if is_valu(prev):
        if o.kind == "mfma" and (o.rd & prev.wr): w = max(w, 2)
        if prev.kind == "trans" and is_valu(o) and o.kind != "trans" and (o.rd & prev.wr): w = max(w, 1)
        if prev.kind == "trans" and o.kind == "trans" and (o.rd & prev.wr): w = max(w, 1)
        if "permlane" in o.text and ((o.rd | o.wr) & prev.wr): w = max(w, 2)
        if ("readlane" in o.text or "readfirstlane" in o.text) and (o.rd & prev.wr): w = max(w, 1)
        sw = set(r for r in prev.wr if r[0] == "s")
        if sw:
            if is_valu(o) and (o.rd & sw): w = max(w, 2)
            if o.kind == "vmem" and (o.rd & sw): w = max(w, 5)
            if o.kind in ("salu", "branch") and (o.rd & sw): w = max(w, 2)
    if prev.kind == "salu" and ("s", "m0") in prev.wr and o.kind == "vmem" and ("s", "m0") in o.rd: w = max(w, 1)
    if prev.kind == "vmem" and prev.meta.get("store") and (is_valu(o) or o.kind == "mfma") and (o.wr & set(prev.meta["data"])): w = max(w, 2)
    return w

def fix_hazards(traces):
    need = {}
    changed = True
    while changed:
        changed = False
        for tr in traces:
            for i, o in enumerate(tr):
                if o.kind in ("label", "comment"): continue
                dist = need.get(id(o), 0)
                j = i - 1
                while j >= 0 and dist < 14:
                    p = tr[j]
                    if p.kind not in ("label", "comment"):
                        r = required_ws(p, o)
                        if r > dist:
                            need[id(o)] = need.get(id(o), 0) + (r - dist); dist = r; changed = True
                        dist += nlines(p) + need.get(id(p), 0)
                    j -= 1
    return need

def insert_nops(lst, need):
    out = []
    for o in lst:
        n = need.get(id(o), 0)
        while n > 0:
            k = min(n, 8); out.append(nop(k - 1)); n -= k
        out.append(o)
    return out

def resolve_waits(traces):
    counts = {}
    for tr in traces:
        vm = []
        for o in tr:
            if o.kind == "vmem":
                for _ in range(nlines(o)): vm.append(o.tag)
            elif o.kind == "wait" and o.need.get("vm") is not None:
                tg = o.need["vm"]
                if tg == "all": n = 0
                else:
                    tags = tg if isinstance(tg, list) else [tg]
                    n = 63
                    for t in tags:
                        idx = None
                        for k in range(len(vm) - 1, -1, -1):
                            if vm[k] == t: idx = k; break
                        if idx is not None: n = min(n, len(vm) - 1 - idx)
                counts[id(o)] = min(counts.get(id(o), 63), n)
    for tr in traces:
        for o in tr:
            if o.kind == "wait" and o.text.startswith("s_waitcnt ?"):
                parts = []
                if o.need.get("vm") is not None: parts.append("vmcnt(%d)" % min(63, counts[id(o)]))
                if o.need.get("lgkm") is not None: parts.append("lgkmcnt(%d)" % o.need["lgkm"])
                o.need["vmn"] = min(63, counts[id(o)]) if o.need.get("vm") is not None else None
                o.text = "s_waitcnt " + " ".join(parts)

def check_trace(tr, name="", role="K"):
    errs = []
    dsq = []; vmq = []
    landed = {}
    own = {}
    reads_open = []
    read_done_since_bar = {}
    unsafe = {}
    for o, blk in tr:
        if o.kind in ("label", "comment"): continue
        pend = set()
        for p, k in dsq: pend |= p.wr
        for p, k in vmq: pend |= p.wr
        bad = (o.rd | o.wr) & pend
        if bad: errs.append("%s: %s touches pending regs %s" % (name, o.text, sorted(bad)[:4]))
        if o.kind == "ds":
            key = None
            if "ring" in o.meta and o.meta["ring"][0] == role:
                ring, tile = o.meta["ring"]; tile += 16 * blk
                pos = tile % 8 if ring == "K" else (tile + 3) % 8
                key = (ring, pos)
                if landed.get(key) != tile: errs.append("%s: %s reads %s tile %d but visible is %s" % (name, o.text, ring, tile, landed.get(key)))
                unsafe[key] = "open"
            dsq.append((o, key))
        elif o.kind == "vmem":
            key = None
            if o.meta.get("dma") and ("ring" in o.meta or "n" in o.meta):
                if "ring" in o.meta: ring, tile = o.meta["ring"]
                else: ring, tile = role, o.meta["n"] + (8 if role == "K" else 5)
                tile += 16 * blk
                pos = tile % 8 if ring == "K" else (tile + 3) % 8
                key = (ring, pos, tile)
                if unsafe.get((ring, pos)): errs.append("%s: DMA %s tile %d overwrites slot with unfenced reads" % (name, ring, tile))
                landed[(ring, pos)] = None
            for _ in range(nlines(o)): vmq.append((o, key))
        elif o.kind == "wait":
            n = o.need.get("lgkm")
            if n is not None:
                while len(dsq) > n:
                    p, k = dsq.pop(0)
                    if k is not None and not any(k2 == k for _, k2 in dsq): unsafe[k] = "done"
            n = o.need.get("vmn")
            if n is not None:
                while len(vmq) > n:
                    p, k = vmq.pop(0)
                    if k is not None: own[k[:2]] = (k[2], not any(k2 == k for _, k2 in vmq))
        elif o.kind == "barrier":
            for k, (tile, full) in list(own.items()):
                if full: landed[k] = tile; del own[k]
            for k in list(unsafe):
                if unsafe[k] == "done": unsafe[k] = None
        if len(vmq) > 63: errs.append("%s: more than 63 vmem outstanding at %s" % (name, o.text))
    return errs
```

```python
import sys
from core import *
from sched import *
import sched

OPT = dict(stamps=0, thr_log2=30, prefetch_code=0, qnt=0, ont=0, kvnt=0)
for a in sys.argv[2:]:
    k, v = a.split("="); OPT[k] = int(v)

NAME = "standalone__mha_softmax__near_ridge"
HEAD_Q = 496 * 256
HEAD_KV = 512 * 256
BLK_Q = 128 * HEAD_Q
BLK_KV = 128 * HEAD_KV
BIG = BLK_KV - 15 * 8192
VRING = 65536
FLAGS = 131072
LDS_BYTES = 131072 + 64

KADDR = 0
VADDR = 8
DMAV = 12
VQ = 16
L = 18
NEGMC = 20
RCP = (22, 24)
TMP = 26
def S(b, u): return 32 + 32 * b + 16 * u
def P(b, u): return 96 + 16 * b + 8 * u
def O(u, t): return 128 + 64 * u + 16 * t
def Q(u, s): return 32 * u + 4 * s
QN = 64
def KF(s): return 128 + 4 * s
def VF(kk, t): return 160 + 16 * kk + 4 * t
SRD_Q, SRD_KV, SRD_O = 4, 8, 12
S_OFF, S_INCA, S_INCB, S_M0B, S_C, S_B, S_NRA, S_NRB, S_BAD, S_THR, S_WAVE = 16, 17, 18, 19, 20, 21, 22, 23, 24, 25, 26
S_T0, S_T1 = 27, 28
S_MA, S_MB = 30, 44
S_PTR = 32
S_HEAD0, S_HALF, S_NR, S_NEGC, S_BIT = 40, 41, 42, 43, 46
S_WS = 48
S_ST = 50
v = lambda i, n=1: ("v", i, n)
a = lambda i, n=1: ("a", i, n)
s = lambda i, n=1: ("s", i, n)

QX = " nt" if OPT["qnt"] else ""
OX = " nt" if OPT["ont"] else ""
KVX = " nt" if OPT["kvnt"] else ""

def qk_mfmas(n):
    b = n % 2
    out = []
    for st in range(8):
        for u in range(2):
            out.append(mfma(("v", S(b, u)), ("a", KF(st)), ("a", Q(u, st)), c=(0 if st == 0 else None), meta={"nm": "QK%d" % n}))
    return out
def pv_mfmas(n, first=False):
    b = n % 2
    out = []
    for kk in range(2):
        for t in range(4):
            for u in range(2):
                out.append(mfma(("v", O(u, t)), ("a", VF(kk, t)), ("v", P(b, u) + 4 * kk), c=(0 if (first and kk == 0) else None), meta={"nm": "PV%d" % n}))
    return out
def k_read(tile, st):
    pos = tile % 8
    return ds_read(("a", KF(st)), 4, KADDR + st, pos * 8192, meta={"ring": ("K", tile)})
def v_reads(tile, f):
    kk, t = f // 4, f % 4
    pos = (tile + 3) % 8
    out = []
    for jj in range(2):
        out.append(ds_read(("a", VF(kk, t) + 2 * jj), 2, VADDR + t, pos * 8192 + (16 * kk + 8 * jj) * 256, tr=True, meta={"ring": ("V", tile)}))
    return out
def sm_ops(n, first=False):
    b = n % 2
    out = []
    for u in range(2):
        for r in range(16):
            e = 16 * u + r
            x = S(b, u) + r
            out.append(valu("v_fma_f32", v(x), [v(x), s(S_C), v(NEGMC + u)], meta={"key": ("F", n, e)}))
            out.append(valu("v_exp_f32", v(x), [v(x)], kind="trans", meta={"key": ("E", n, e)}))
            if first and r == 0:
                out.append(valu("v_mov_b32", v(L + u), [v(x)], meta={"key": ("A", n, e)}))
            else:
                out.append(valu("v_add_f32", v(L + u), [v(L + u), v(x)], meta={"key": ("A", n, e)}))
            if r % 2 == 1:
                out.append(valu("v_cvt_pk_bf16_f32", v(P(b, u) + r // 2), [v(x - 1), v(x)], meta={"key": ("C", n, e)}))
    return out
def max_ops(n):
    b = n % 2
    out = []
    for u in range(2):
        x = S(b, u); T = TMP + 2 * u; T2 = T + 1
        out.append(valu("v_max3_f32", v(T), [v(x), v(x + 1), v(x + 2)]))
        for r in range(3, 15, 2):
            out.append(valu("v_max3_f32", v(T), [v(T), v(x + r), v(x + r + 1)]))
        out.append(valu("v_max_f32", v(T), [v(T), v(x + 15)]))
        out.append(valu("v_mov_b32", v(T2), [v(T)]))
        out.append(valu("v_permlane32_swap_b32", v(T2), [v(T)], wr_extra=[("v", T)], rd_extra=[("v", T2)]))
        out.append(valu("v_max_f32", v(T), [v(T), v(T2)]))
        out.append(valu("v_mul_f32", v(NEGMC + u), [s(S_NEGC), v(T)]))
    return out
def lfinal_ops():
    out = []
    for u in range(2):
        T = TMP + 4 + u
        mk = S_MA if u == 0 else S_MB
        out.append(valu("v_mov_b32", v(T), [v(L + u)]))
        out.append(valu("v_permlane32_swap_b32", v(T), [v(L + u)], wr_extra=[("v", L + u)], rd_extra=[("v", T)]))
        out.append(valu("v_add_f32", v(T), [v(T), v(L + u)]))
        out.append(valu("v_rcp_f32", v(RCP[u]), [v(T)], kind="trans"))
        out.append(valu("v_cmp_nle_f32", s(mk, 2), [v(T), s(S_THR)]))
    txt = "\n  ".join(["s_or_b64 s[%d:%d], s[%d:%d], s[%d:%d]" % (S_MA, S_MA + 1, S_MA, S_MA + 1, S_MB, S_MB + 1),
                       "s_cmp_lg_u64 s[%d:%d], 0" % (S_MA, S_MA + 1),
                       "s_cselect_b32 s%d, s%d, 0" % (S_T0, S_BIT),
                       "s_or_b32 s%d, s%d, s%d" % (S_BAD, S_BAD, S_T0)])
    out.append(raw(txt, "salu", rd=R("s", S_MA, 2) + R("s", S_MB, 2) + [("s", S_BIT), ("s", S_BAD)],
                   wr=R("s", S_MA, 2) + [("s", S_T0), ("s", S_BAD)], cost=16))
    return out
def drain_ops():
    out = []
    for t in range(4):
        for u in range(2):
            o = O(u, t)
            for e in range(2):
                for r in range(8):
                    x = o + 8 * e + r
                    out.append(valu("v_mul_f32", v(x), [v(x), v(RCP[u])]))
                for j in range(4):
                    out.append(valu("v_cvt_pk_bf16_f32", v(o + 8 * e + j), [v(o + 8 * e + 2 * j), v(o + 8 * e + 2 * j + 1)]))
                out.append(gstore(("v", o + 8 * e), VQ + u, SRD_O, 64 * t + 32 * e, ("ost",), extra=OX))
    return out
def q_loads(base, tag):
    out = []
    for u in range(2):
        for st in range(8):
            out.append(gload(("a", base + 32 * u + 4 * st), VQ + u, SRD_Q, 32 * st, tag, extra=QX))
    return out
def dma_ops(n):
    inc = {8: "s%d" % S_INCA, 11: "s%d" % S_INCB}.get(n, "0x2000")
    rd = [("s", S_OFF), ("s", S_M0B)] + ([("s", S_INCA)] if n == 8 else []) + ([("s", S_INCB)] if n == 11 else [])
    s1 = raw("s_add_u32 s%d, s%d, %s" % (S_OFF, S_OFF, inc), "salu", rd=rd, wr=[("s", S_OFF)])
    s2 = raw("s_add_u32 m0, s%d, 0x%x" % (S_M0B, (n % 8) * 8192), "salu", rd=[("s", S_M0B)], wr=[("s", "m0")])
    pre = [s1, s2]
    if n == 8: pre.append(raw("s_mov_b32 s%d, s%d" % (SRD_KV + 2, S_NRA), "salu", rd=[("s", S_NRA)], wr=[("s", SRD_KV + 2)]))
    if n == 11: pre.append(raw("s_mov_b32 s%d, s%d" % (SRD_KV + 2, S_NRB), "salu", rd=[("s", S_NRB)], wr=[("s", SRD_KV + 2)]))
    d = []
    for k in range(4):
        x = dma(DMAV + k, SRD_KV, S_OFF, 1024 * k, ("dma", n % 16), extra=KVX)
        x.meta["n"] = n
        d.append(x)
    return pre, d

def add_slot(reg, n, g0, kind="normal", sm=True, do_dma=True, bar_tag=None, extra_seq_after_qk=(), qloads=None):
    vr = []
    for f in range(8): vr += v_reads(n - 1, f)
    vgaps = [0, 0, 1, 1, 2, 2, 3, 3, 4, 5, 6, 7, 8, 9, 10, 11]
    qk = qk_mfmas(n + 1); pv = pv_mfmas(n - 1, first=(n == 17 or n == 1))
    for o, g in zip(vr, vgaps): reg.fix_front(g0 + g, o)
    for m in qk: reg.bb(m)
    for o in extra_seq_after_qk: reg.add(o)
    if sm:
        for o in sm_ops(n): reg.add(o)
    if do_dma:
        pre, d = dma_ops(n)
        reg.fix_end(g0 + 9, pre[0]); reg.fix_end(g0 + 10, pre[1])
        for o in pre[2:]: reg.fix_end(g0 + 8, o)
        for k, o in enumerate(d): reg.fix_front(g0 + 12 + k, o)
    for m in pv: reg.bb(m)
    for st in range(8): reg.fix_front(g0 + 16 + st, k_read(n + 2, st))
    if qloads:
        for k, o in enumerate(qloads): reg.fix_front(g0 + 24 + k, o)
    add_bar(reg, g0 + 31, bar_tag if bar_tag is not None else (n + 1 - 6) % 16)
def add_bar(reg, gap, tagn):
    reg.fix_front(gap, wait(vm=("dma", tagn), lgkm="auto"))
    reg.fix_front(gap, barrier())

def book_ops_early(reg, g):
    t = "\n  ".join(["s_cmp_eq_u32 s%d, 3" % S_B, "s_cselect_b32 s%d, 0, s%d" % (S_NRB, S_NR), "s_cselect_b32 s%d, 0, 0x%x" % (SRD_Q + 2, HEAD_Q)])
    reg.fix_end(g + 24, raw(t, "salu", rd=[("s", S_B), ("s", S_NR)], wr=[("s", S_NRB), ("s", SRD_Q + 2)], cost=12))
    t = "\n  ".join(["s_cmp_lt_u32 s%d, 2" % S_WAVE, "s_cselect_b32 s%d, s%d, s%d" % (S_NRA, S_NRB, S_NR)])
    reg.fix_end(g + 25, raw(t, "salu", rd=[("s", S_WAVE), ("s", S_NRB), ("s", S_NR)], wr=[("s", S_NRA)], cost=8))
def book_ops_late(reg, g):
    t = "\n  ".join(["s_add_u32 s%d, s%d, 0x%x" % (SRD_Q, SRD_Q, BLK_Q), "s_addc_u32 s%d, s%d, 0" % (SRD_Q + 1, SRD_Q + 1)])
    reg.fix_end(g + 24, raw(t, "salu", rd=R("s", SRD_Q, 2), wr=R("s", SRD_Q, 2), cost=8))

def build_loop():
    reg = Region("loop")
    qn = q_loads(QN, ("qn",))
    for n in range(2, 14):
        g0 = len(reg.backbone)
        ql = qn[4 * (n - 3): 4 * (n - 3) + 4] if 3 <= n <= 6 else None
        add_slot(reg, n, g0, qloads=ql)
        if n == 2: book_ops_early(reg, g0)
        if n == 7: book_ops_late(reg, g0)
    g0 = len(reg.backbone)
    cp = [valu("v_accvgpr_mov_b32", a(i), [a(QN + i)]) for i in [32 * u + 4 * st + k for st in range(8) for u in range(2) for k in range(4)]]
    add_slot(reg, 14, g0, extra_seq_after_qk=[], bar_tag=10)
    for o in cp: reg.add(o)
    exit_gap = len(reg.backbone) - 1
    g0 = len(reg.backbone)
    n = 15
    vr = []
    for f in range(8): vr += v_reads(14, f)
    vgaps = [0, 0, 1, 1, 2, 2, 3, 3, 4, 5, 6, 7, 8, 9, 10, 11]
    for o, g in zip(vr, vgaps): reg.fix_front(g0 + g, o)
    for m in qk_mfmas(16): reg.bb(m)
    for o in sm_ops(15): reg.add(o)
    pre, d = dma_ops(15)
    reg.fix_end(g0 + 9, pre[0]); reg.fix_end(g0 + 10, pre[1])
    for k, o in enumerate(d): reg.fix_front(g0 + 12 + k, o)
    pv = pv_mfmas(14)
    for j, m in enumerate(pv):
        reg.bb(m)
        if j % 2 == 1:
            for o in v_reads(15, j // 2): reg.fix_front(g0 + 16 + j, o)
    mx = max_ops(16)
    for o in mx: reg.add(o)
    add_bar(reg, g0 + 31, 10)
    g0 = len(reg.backbone)
    for o in lfinal_ops(): reg.add(o)
    for st in range(8): reg.fix_front(g0 + st, k_read(17, st))
    for m in pv_mfmas(15): reg.bb(m)
    for o in sm_ops(16, first=True): reg.add(o)
    pre, d = dma_ops(16)
    reg.fix_end(g0 + 9, pre[0]); reg.fix_end(g0 + 10, pre[1])
    for k, o in enumerate(d): reg.fix_front(g0 + 12 + k, o)
    qk = qk_mfmas(17)
    for j, m in enumerate(qk):
        reg.bb(m)
        if j % 2 == 1: reg.fix_front(g0 + 16 + j, k_read(18, j // 2))
    for o in drain_ops(): reg.add(o)
    add_bar(reg, g0 + 31, 11)
    g0 = len(reg.backbone)
    add_slot(reg, 17, g0)
    t = "\n  ".join(["s_add_u32 s%d, s%d, 1" % (S_B, S_B), "s_lshl_b32 s%d, s%d, 1" % (S_BIT, S_BIT)])
    reg.fix_end(g0 + 28, raw(t, "salu", rd=[("s", S_B), ("s", S_BIT)], wr=[("s", S_B), ("s", S_BIT)], cost=8))
    t = "\n  ".join(["s_add_u32 s%d, s%d, 0x%x" % (SRD_O, SRD_O, BLK_Q), "s_addc_u32 s%d, s%d, 0" % (SRD_O + 1, SRD_O + 1)])
    reg.fix_end(g0 + 29, raw(t, "salu", rd=R("s", SRD_O, 2), wr=R("s", SRD_O, 2), cost=8))
    return reg, exit_gap

def build_prologue():
    reg = Region("prologue")
    for st in range(8):
        o = k_read(0, st); reg.pre.append(o); reg.seq.append(o)
    g0 = 0
    for j, m in enumerate(qk_mfmas(0)):
        reg.bb(m)
        if j % 2 == 1: reg.fix_front(g0 + j, k_read(1, j // 2))
    add_bar(reg, g0 + 15, 10)
    g0 = len(reg.backbone)
    for o in max_ops(0): reg.add(o)
    qk = qk_mfmas(1)
    pre, d = dma_ops(0)
    for j, m in enumerate(qk):
        reg.bb(m)
        if j % 2 == 1: reg.fix_front(g0 + j, k_read(2, j // 2))
    reg.fix_end(g0 + 1, pre[0]); reg.fix_end(g0 + 2, pre[1])
    for k, o in enumerate(d): reg.fix_front(g0 + 4 + 2 * k, o)
    for o in sm_ops(0, first=True): reg.add(o)
    add_bar(reg, g0 + 15, 11)
    g0 = len(reg.backbone)
    add_slot(reg, 1, g0)
    return reg

def build_tail(done_keys):
    reg = Region("tail")
    for f in range(8):
        for o in v_reads(14, f): reg.pre.append(o); reg.seq.append(o)
    fill = Inst("", "comment", meta={"fill": 140}); reg.pre.append(fill)
    for o in sm_ops(15): reg.add(o)
    for j, m in enumerate(pv_mfmas(14)):
        reg.bb(m)
        if j % 2 == 1:
            for o in v_reads(15, j // 2): reg.fix_front(j, o)
    for o in lfinal_ops(): reg.add(o)
    for m in pv_mfmas(15): reg.bb(m)
    for o in drain_ops(): reg.add(o)
    return reg

import struct
def fbits(x): return struct.unpack("<I", struct.pack("<f", x))[0]
C_SCALE = (128 ** -0.5) * 1.4426950408889634

def T(lines):
    out = []
    for l in lines.strip("\n").split("\n"):
        l = l.strip()
        if not l: continue
        if l.endswith(":"): out.append(label(l[:-1]))
        elif l.startswith(";"): out.append(comment(l[1:].strip()))
        else: out.append(raw(l, "salu"))
    return out

def stamp(k):
    if not OPT["stamps"]: return []
    return [raw("s_memtime s[%d:%d]" % (S_ST + 2 * k, S_ST + 2 * k + 1), "salu", cost=4)]

def setup_text():
    t = f"""
  s_cmp_ge_u32 s2, 256
  s_cbranch_scc1 L_end
  s_load_dwordx8 s[{S_PTR}:{S_PTR+7}], s[0:1], 0
  s_load_dwordx2 s[{S_WS}:{S_WS+1}], s[0:1], 40
  v_lshrrev_b32 v31, 6, v0
  v_and_b32 v30, 63, v0
  s_and_b32 s{S_T0}, s2, 7
  v_readfirstlane_b32 s{S_WAVE}, v31
  s_lshr_b32 s{S_T1}, s2, 3
  s_and_b32 s{S_HALF}, s{S_T1}, 1
  s_lshr_b32 s{S_T1}, s{S_T1}, 1
  s_lshl_b32 s{S_T1}, s{S_T1}, 3
  s_add_u32 s{S_HEAD0}, s{S_T1}, s{S_T0}
  s_mov_b32 s{S_C}, 0x{fbits(C_SCALE):x}
  s_mov_b32 s{S_NEGC}, 0x{fbits(-C_SCALE):x}
  s_mov_b32 s{S_THR}, 0x{fbits(2.0 ** OPT['thr_log2']):x}
  s_mov_b32 s{S_B}, 0
  s_mov_b32 s{S_BAD}, 0
  s_mov_b32 s{S_BIT}, 1
  v_and_b32 v29, 31, v30
  v_lshrrev_b32 v28, 5, v30
  s_lshl_b32 s{S_T0}, s{S_HALF}, 8
  s_lshl_b32 s{S_T1}, s{S_WAVE}, 6
  s_add_u32 s{S_T0}, s{S_T0}, s{S_T1}
  v_add_u32 v27, s{S_T0}, v29
  v_lshlrev_b32 v27, 8, v27
  v_lshl_add_u32 v{VQ}, v28, 4, v27
  v_add_u32 v{VQ+1}, 0x2000, v{VQ}
  s_and_b32 s{S_T0}, s{S_WAVE}, 1
  s_cmp_lt_u32 s{S_WAVE}, 2
  s_cselect_b32 s{S_T1}, 0, 2
  s_cselect_b32 s29, 4, 0
  s_cselect_b32 s{S_M0B}, 0, 0x{VRING:x}
  s_mov_b32 s47, 0x2000
  s_cselect_b32 s{S_INCA}, 0x{BIG:x}, s47
  s_cselect_b32 s{S_INCB}, s47, 0x{BIG:x}
  s_lshl_b32 s47, s{S_T0}, 12
  s_add_u32 s{S_M0B}, s{S_M0B}, s47
  v_lshrrev_b32 v27, 4, v30
  v_and_b32 v26, 15, v30
  v_lshlrev_b32 v25, s{S_T1}, v27
  v_lshlrev_b32 v24, 8, v27
  v_add_u32 v24, s47, v24
  v_xor_b32 v23, v26, v25
  v_lshl_add_u32 v{DMAV}, v23, 4, v24
  v_add_u32 v25, s29, v25
  v_xor_b32 v23, v26, v25
  v_lshl_add_u32 v{DMAV+1}, v23, 4, v24
  v_add_u32 v25, s29, v25
  v_xor_b32 v23, v26, v25
  v_lshl_add_u32 v{DMAV+2}, v23, 4, v24
  v_add_u32 v25, s29, v25
  v_xor_b32 v23, v26, v25
  v_lshl_add_u32 v{DMAV+3}, v23, 4, v24
  s_waitcnt lgkmcnt(0)
  ; SRDs
  s_mul_i32 s{S_T0}, s{S_HEAD0}, 0x{HEAD_Q:x}
  s_add_u32 s{SRD_Q}, s{S_PTR}, s{S_T0}
  s_addc_u32 s{SRD_Q+1}, s{S_PTR+1}, 0
  s_mov_b32 s{SRD_Q+2}, 0x{HEAD_Q:x}
  s_mov_b32 s{SRD_Q+3}, 0x20000
  s_add_u32 s{SRD_O}, s{S_PTR+6}, s{S_T0}
  s_addc_u32 s{SRD_O+1}, s{S_PTR+7}, 0
  s_mov_b32 s{SRD_O+2}, 0x{HEAD_Q:x}
  s_mov_b32 s{SRD_O+3}, 0x20000
  s_cmp_lt_u32 s{S_WAVE}, 2
  s_cselect_b32 s{SRD_KV}, s{S_PTR+2}, s{S_PTR+4}
  s_cselect_b32 s{SRD_KV+1}, s{S_PTR+3}, s{S_PTR+5}
  s_lshl_b32 s{S_T0}, s{S_HEAD0}, 17
  s_add_u32 s{SRD_KV}, s{SRD_KV}, s{S_T0}
  s_addc_u32 s{SRD_KV+1}, s{SRD_KV+1}, 0
  s_sub_u32 s{S_NR}, 0x4000000, s{S_T0}
  s_mov_b32 s{SRD_KV+2}, s{S_NR}
  s_mov_b32 s{SRD_KV+3}, 0x20000
  s_mov_b32 s{S_OFF}, 0
"""
    return T(t)

def addr_consts_text():
    t = f"""
  v_and_b32 v27, 15, v29
  v_xor_b32 v27, v27, v28
  v_lshlrev_b32 v26, 8, v29
  v_lshl_add_u32 v{KADDR}, v27, 4, v26
"""
    for st in range(1, 8):
        t += f"  v_xor_b32 v{KADDR+st}, {32*st}, v{KADDR}\n"
    t += f"""
  v_bfe_u32 v27, v30, 2, 2
  v_lshl_add_u32 v26, v28, 2, v27
  v_lshlrev_b32 v26, 8, v26
  v_bfe_u32 v25, v30, 4, 1
  v_lshl_add_u32 v26, v25, 5, v26
  v_and_b32 v25, 1, v30
  v_lshlrev_b32 v25, 1, v25
  v_bfe_u32 v24, v30, 1, 1
  v_add_u32 v25, v25, v24
  v_lshl_add_u32 v26, v25, 3, v26
  v_add_u32 v26, 0x{VRING:x}, v26
"""
    for tt in range(4):
        t += f"  v_xor_b32 v25, {tt}, v27\n  v_lshl_add_u32 v{VADDR+tt}, v25, 6, v26\n"
    return T(t)

def first_loads(role):
    out = []
    ql = q_loads(0, ("q0",))
    def tile(j):
        pos = j % 8 if role == "K" else (j + 3) % 8
        vs = (j - 8) % 16 if role == "K" else (j - 5) % 16
        o = []
        if j > 0: o.append(raw("s_add_u32 s%d, s%d, 0x2000" % (S_OFF, S_OFF), "salu"))
        o.append(raw("s_add_u32 m0, s%d, 0x%x" % (S_M0B, pos * 8192), "salu", wr=[("s", "m0")]))
        for k in range(4):
            x = dma(DMAV + k, SRD_KV, S_OFF, 1024 * k, ("dma", vs), extra=KVX)
            x.meta["ring"] = (role, j)
            o.append(x)
        return o
    if role == "K":
        out += tile(0) + ql
        for j in range(1, 8): out += tile(j)
        out.append(wait(vm=[("q0",), ("dma", (1 - 8) % 16)]))
    else:
        out += ql
        for j in range(0, 5): out += tile(j)
        out.append(wait(vm=("q0",)))
    return out

def slow_path():
    o = []
    A = o.append
    def X(t): o.extend(T(t))
    MOLD = (TMP, TMP + 1); ALPHA = (RCP[0], RCP[1]); T1 = (TMP + 2, TMP + 3); T2 = (TMP + 4, TMP + 5)
    X(f"""
L_slow:
  s_mov_b32 s{S_B}, 0
L_sb:
  s_lshr_b32 s{S_T0}, s{S_BAD}, s{S_B}
  s_and_b32 s{S_T0}, s{S_T0}, 1
  s_cmp_eq_u32 s{S_T0}, 0
  s_cbranch_scc1 L_sb_next
  s_lshl_b32 s{S_T0}, s{S_B}, 7
  s_add_u32 s{S_T0}, s{S_T0}, s{S_HEAD0}
  s_mul_i32 s{S_T1}, s{S_T0}, 0x{HEAD_Q:x}
  s_add_u32 s{SRD_Q}, s{S_PTR}, s{S_T1}
  s_addc_u32 s{SRD_Q+1}, s{S_PTR+1}, 0
  s_mov_b32 s{SRD_Q+2}, 0x{HEAD_Q:x}
  s_add_u32 s{SRD_O}, s{S_PTR+6}, s{S_T1}
  s_addc_u32 s{SRD_O+1}, s{S_PTR+7}, 0
  s_mov_b32 s{SRD_O+2}, 0x{HEAD_Q:x}
  s_cmp_lt_u32 s{S_WAVE}, 2
  s_cselect_b32 s{SRD_KV}, s{S_PTR+2}, s{S_PTR+4}
  s_cselect_b32 s{SRD_KV+1}, s{S_PTR+3}, s{S_PTR+5}
  s_lshl_b32 s{S_T0}, s{S_T0}, 17
  s_add_u32 s{SRD_KV}, s{SRD_KV}, s{S_T0}
  s_addc_u32 s{SRD_KV+1}, s{SRD_KV+1}, 0
  s_mov_b32 s{SRD_KV+2}, 0x{HEAD_KV:x}
  s_waitcnt vmcnt(0) lgkmcnt(0)
  s_barrier
""")
    for x in q_loads(0, ("sq",)): A(x)
    for r in range(128): A(valu("v_mov_b32", v(128 + r), ["0"]))
    for u in range(2):
        A(valu("v_mov_b32", v(L + u), ["0"]))
        A(valu("v_mov_b32", v(MOLD[u]), ["0xff800000"]))
    X(f"""
  s_mov_b32 s{S_OFF}, 0
L_st:
  s_mov_b32 m0, s{S_M0B}
  s_nop 0
""")
    for k in range(4): A(dma(DMAV + k, SRD_KV, S_OFF, 1024 * k, ("sd",)))
    X("""
  s_waitcnt vmcnt(0)
  s_barrier
""")
    for st in range(8): A(ds_read(("a", KF(st)), 4, KADDR + st, 0))
    for f in range(8):
        kk, t = f // 4, f % 4
        for jj in range(2):
            A(ds_read(("a", VF(kk, t) + 2 * jj), 2, VADDR + t, (16 * kk + 8 * jj) * 256, tr=True))
    X("  s_waitcnt lgkmcnt(0)")
    for m in qk_mfmas(0): A(m)
    for u in range(2):
        x = S(0, u); t1 = T1[u]; t2 = T2[u]
        A(valu("v_max3_f32", v(t1), [v(x), v(x + 1), v(x + 2)]))
        for r in range(3, 15, 2): A(valu("v_max3_f32", v(t1), [v(t1), v(x + r), v(x + r + 1)]))
        A(valu("v_max3_f32", v(t1), [v(t1), v(x + 15), v(MOLD[u])]))
        A(valu("v_mov_b32", v(t2), [v(t1)]))
        A(valu("v_permlane32_swap_b32", v(t2), [v(t1)], wr_extra=[("v", t1)], rd_extra=[("v", t2)]))
        A(valu("v_max_f32", v(t1), [v(t1), v(t2)]))
        A(valu("v_sub_f32", v(t2), [v(MOLD[u]), v(t1)]))
        A(valu("v_mul_f32", v(t2), [s(S_C), v(t2)]))
        A(valu("v_exp_f32", v(ALPHA[u]), [v(t2)], kind="trans"))
        A(valu("v_mov_b32", v(MOLD[u]), [v(t1)]))
        A(valu("v_mul_f32", v(NEGMC + u), [s(S_NEGC), v(t1)]))
        A(valu("v_mul_f32", v(L + u), [v(L + u), v(ALPHA[u])]))
        for r in range(16): A(valu("v_fma_f32", v(x + r), [v(x + r), s(S_C), v(NEGMC + u)]))
        for r in range(16): A(valu("v_exp_f32", v(x + r), [v(x + r)], kind="trans"))
        for r in range(16): A(valu("v_add_f32", v(L + u), [v(L + u), v(x + r)]))
        for j in range(8): A(valu("v_cvt_pk_bf16_f32", v(P(0, u) + j), [v(x + 2 * j), v(x + 2 * j + 1)]))
        for t in range(4):
            for r in range(16): A(valu("v_mul_f32", v(O(u, t) + r), [v(O(u, t) + r), v(ALPHA[u])]))
    for m in pv_mfmas(0): A(m)
    X(f"""
  s_barrier
  s_add_u32 s{S_OFF}, s{S_OFF}, 0x2000
  s_cmp_lt_u32 s{S_OFF}, 0x20000
  s_cbranch_scc1 L_st
""")
    for u in range(2):
        Tm = T1[u]
        A(valu("v_mov_b32", v(Tm), [v(L + u)]))
        A(valu("v_permlane32_swap_b32", v(Tm), [v(L + u)], wr_extra=[("v", L + u)], rd_extra=[("v", Tm)]))
        A(valu("v_add_f32", v(Tm), [v(Tm), v(L + u)]))
        A(valu("v_rcp_f32", v(RCP[u]), [v(Tm)], kind="trans"))
    for x in drain_ops(): A(x)
    X(f"""
L_sb_next:
  s_add_u32 s{S_B}, s{S_B}, 1
  s_cmp_lt_u32 s{S_B}, 4
  s_cbranch_scc1 L_sb
""")
    return o

def end_text():
    return T(f"""
  v_mov_b32 v26, s{S_BAD}
  s_lshl_b32 s{S_T0}, s{S_WAVE}, 2
  s_add_u32 s{S_T0}, s{S_T0}, 0x{FLAGS:x}
  v_mov_b32 v27, s{S_T0}
  v_mov_b32 v28, 0x{FLAGS:x}
  ds_write_b32 v27, v26
  s_waitcnt lgkmcnt(0)
  s_barrier
  ds_read_b128 v[32:35], v28
  s_waitcnt lgkmcnt(0)
  v_or_b32 v32, v32, v33
  v_or_b32 v34, v34, v35
  v_or_b32 v32, v32, v34
  s_nop 1
  v_readfirstlane_b32 s{S_BAD}, v32
  s_nop 3
  s_cmp_eq_u32 s{S_BAD}, 0
  s_cbranch_scc1 L_fin
""")

def stamps_out(n):
    if not OPT["stamps"]: return []
    t = "  s_waitcnt lgkmcnt(0)\n"
    t += f"  s_lshl_b32 s{S_T0}, s2, 2\n  s_add_u32 s{S_T0}, s{S_T0}, s{S_WAVE}\n  s_lshl_b32 s{S_T0}, s{S_T0}, 6\n"
    t += f"  s_mov_b32 s4, s{S_WS}\n  s_mov_b32 s5, s{S_WS+1}\n  s_mov_b32 s6, 0x100000\n  s_mov_b32 s7, 0x20000\n"
    t += f"  v_mov_b32 v27, s{S_T0}\n  s_mov_b64 exec, 1\n"
    for k in range(n):
        t += f"  v_mov_b32 v26, s{S_ST + 2 * k}\n  buffer_store_dword v26, v27, s[4:7], 0 offen offset:{4*k}\n  s_nop 1\n"
    t += "  s_mov_b64 exec, -1\n"
    return T(t)

def main():
    pro = build_prologue()
    loop, exit_gap = build_loop()
    p_end = plan_lgkm_waits(pro); assert not p_end, p_end
    l_end = plan_lgkm_waits(loop); assert not l_end, l_end
    pro_out, pinfo = schedule(pro)
    loop_out, linfo = schedule(loop, cut={exit_gap: 1})
    pos, keys = linfo["cuts"][exit_gap]
    tail = build_tail(keys)
    plan_lgkm_waits(tail)
    tail_out, tinfo = schedule(tail, skip_keys=set(k for k in keys if k[1] == 15))
    exit_m = raw("s_cmp_eq_u32 s%d, 3\n  s_cbranch_scc1 L_tail" % S_B, "branch", cost=8)
    loopA = loop_out[:pos] + [exit_m]; loopB = loop_out[pos:]
    back = raw("s_branch L_loop", "branch")
    sys.stderr.write("prologue est %d cyc, loop est %d cyc (%d mfma), tail est %d\n" % (pinfo["t"], linfo["t"], len(loop.backbone), tinfo["t"]))
    mt = linfo["mt"] + [linfo["t"]]
    sys.stderr.write("loop slot cycles: %s\n" % " ".join("%d:%d" % (i + 2, mt[min(32 * (i + 1), len(mt) - 1)] - mt[32 * i]) for i in range(16)))
    sys.stderr.write("loop overflow gaps: %s\n" % (" ".join("%d:%d" % x for x in linfo["overflow"])))

    setup = setup_text()
    consts = addr_consts_text()
    fK = first_loads("K"); fV = first_loads("V")
    qadv = T(f"  s_add_u32 s{SRD_Q}, s{SRD_Q}, 0x{BLK_Q:x}\n  s_addc_u32 s{SRD_Q+1}, s{SRD_Q+1}, 0")
    bar0 = [barrier()]
    st = stamp
    tail_pre = [label("L_tail")] + st(5)
    slow = slow_path()
    def trace(first):
        tr = [(o, 0) for o in first[:-1] + consts + [first[-1]] + bar0 + pro_out]
        tr += [(o, 0) for o in loopA + loopB]
        tr += [(o, 1) for o in loopA + loopB]
        tr += [(o, 2) for o in loopA]
        tr += [(o, 2) for o in tail_out]
        return tr
    trK = trace(fK); trV = trace(fV)
    resolve_waits([[o for o, b in trK], [o for o, b in trV]])
    need = fix_hazards([[o for o, b in trK], [o for o, b in trV], slow + slow])
    errs = check_trace(trK, "K", "K") + check_trace(trV, "V", "V")
    for e in errs[:40]: sys.stderr.write("CHECK: " + e + "\n")
    if errs: raise SystemExit("trace check failed (%d)" % len(errs))
    nn = sum(need.values())
    sys.stderr.write("hazard nops: %d sites, %d states\n" % (len(need), nn))
    N = lambda l: insert_nops(l, need)
    prog = []
    prog += st(0) + setup
    prog += T(f"  s_cmp_lt_u32 s{S_WAVE}, 2\n  s_cbranch_scc0 L_roleV")
    prog += N(fK[:-1]) + T("  s_branch L_rolejoin0")
    prog += [label("L_roleV")] + N(fV[:-1]) + [label("L_rolejoin0")]
    prog += consts + qadv
    prog += T(f"  s_cmp_lt_u32 s{S_WAVE}, 2\n  s_cbranch_scc0 L_roleV2") + [fK[-1]] + T("  s_branch L_rolejoin1")
    prog += [label("L_roleV2"), fV[-1], label("L_rolejoin1")]
    prog += bar0 + st(1)
    prog += N(pro_out) + st(2)
    prog += [raw(".p2align 6", "comment"), label("L_loop")]
    prog += N(loopA) + N(loopB) + st(3) + [back]
    prog += tail_pre + N(tail_out) + st(4)
    prog += end_text()
    prog += N(slow)
    prog += [label("L_fin")] + stamps_out(6) + [label("L_end"), raw("s_endpgm")]
    hdr = open("cdna_kernels/%s.s.ref" % NAME).read().split("\n")
    head = [l for l in hdr[:9]]
    txt = "\n".join(head) + "\n"
    txt += "; @launch grid=(256,1,1) block=(256,1,1) lds=%d\n" % LDS_BYTES
    txt += '.amdgcn_target "amdgcn-amd-amdhsa--gfx950"\n.text\n.globl %s_kernel\n.p2align 8\n.type %s_kernel,@function\n%s_kernel:\n' % (NAME, NAME, NAME)
    for o in prog:
        if o.kind == "label": txt += o.text + "\n"
        elif o.kind == "comment":
            if o.text.startswith(".p2align"): txt += o.text + "\n"
            elif o.text: txt += "  " + o.text + "\n"
        else: txt += "  " + o.text + "\n"
    txt += """.section .rodata,"a"
.p2align 6
.amdhsa_kernel %s_kernel
  .amdhsa_next_free_vgpr 448
  .amdhsa_next_free_sgpr 96
  .amdhsa_accum_offset 256
  .amdhsa_group_segment_fixed_size 0
  .amdhsa_kernarg_size 48
  .amdhsa_user_sgpr_count 2
  .amdhsa_user_sgpr_kernarg_segment_ptr 1
  .amdhsa_system_sgpr_workgroup_id_x 1
  .amdhsa_float_denorm_mode_32 3
.end_amdhsa_kernel
""" % NAME
    open(sys.argv[1], "w").write(txt)
    n_inst = sum(1 for o in prog if o.kind not in ("label", "comment"))
    sys.stderr.write("total insts (macro-level) %d\n" % n_inst)

main()
```

```python
import sys
from core import *
from sched import *
import sched

OPT = dict(nostore=0, noq=0, fakeq=0, fakeo=0, nokv=0, stamps=0, thr_log2=30, prefetch_code=0, qnt=0, ont=0, kvnt=0)
for a in sys.argv[2:]:
    k, v = a.split("="); OPT[k] = int(v)

NAME = "standalone__mha_softmax__near_ridge"
HEAD_Q = 496 * 256
HEAD_KV = 512 * 256
BLK_Q = 128 * HEAD_Q
BLK_KV = 128 * HEAD_KV
BIG = BLK_KV - 15 * 8192
VRING = 65536
FLAGS = 131072
LDS_BYTES = 131072 + 64

KADDR = 0
VADDR = 8
DMAV = 12
VQ = 16
L = 18
NEGMC = 20
RCP = (22, 24)
TMP = 26
def S(b, u): return 32 + 32 * b + 16 * u
def P(b, u): return 96 + 16 * b + 8 * u
def O(u, t): return 128 + 64 * u + 16 * t
def Q(u, s): return 32 * u + 4 * s
QN = 64
def KF(s): return 128 + 4 * s
def VF(kk, t): return 160 + 16 * kk + 4 * t
SRD_Q, SRD_KV, SRD_O = 4, 8, 12
S_OFF, S_INCA, S_INCB, S_M0B, S_C, S_B, S_NRA, S_NRB, S_BAD, S_THR, S_WAVE = 16, 17, 18, 19, 20, 21, 22, 23, 24, 25, 26
S_T0, S_T1 = 27, 28
S_MA, S_MB = 30, 44
S_PTR = 32
S_HEAD0, S_HALF, S_NR, S_NEGC, S_BIT = 40, 41, 42, 43, 46
S_WS = 48
S_ST = 50
v = lambda i, n=1: ("v", i, n)
a = lambda i, n=1: ("a", i, n)
s = lambda i, n=1: ("s", i, n)

QX = " nt" if OPT["qnt"] else ""
OX = " nt" if OPT["ont"] else ""
KVX = " nt" if OPT["kvnt"] else ""

def qk_mfmas(n):
    b = n % 2
    out = []
    for st in range(8):
        for u in range(2):
            out.append(mfma(("v", S(b, u)), ("a", KF(st)), ("a", Q(u, st)), c=(0 if st == 0 else None), meta={"nm": "QK%d" % n}))
    return out
def pv_mfmas(n, first=False):
    b = n % 2
    out = []
    for kk in range(2):
        for t in range(4):
            for u in range(2):
                out.append(mfma(("v", O(u, t)), ("a", VF(kk, t)), ("v", P(b, u) + 4 * kk), c=(0 if (first and kk == 0) else None), meta={"nm": "PV%d" % n}))
    return out
def k_read(tile, st):
    pos = tile % 8
    return ds_read(("a", KF(st)), 4, KADDR + st, pos * 8192, meta={"ring": ("K", tile)})
def v_reads(tile, f):
    kk, t = f // 4, f % 4
    pos = (tile + 3) % 8
    out = []
    for jj in range(2):
        out.append(ds_read(("a", VF(kk, t) + 2 * jj), 2, VADDR + t, pos * 8192 + (16 * kk + 8 * jj) * 256, tr=True, meta={"ring": ("V", tile)}))
    return out
def sm_ops(n, first=False):
    b = n % 2
    out = []
    for u in range(2):
        for r in range(16):
            e = 16 * u + r
            x = S(b, u) + r
            out.append(valu("v_fma_f32", v(x), [v(x), s(S_C), v(NEGMC + u)], meta={"key": ("F", n, e)}))
            out.append(valu("v_exp_f32", v(x), [v(x)], kind="trans", meta={"key": ("E", n, e)}))
            if first and r == 0:
                out.append(valu("v_mov_b32", v(L + u), [v(x)], meta={"key": ("A", n, e)}))
            else:
                out.append(valu("v_add_f32", v(L + u), [v(L + u), v(x)], meta={"key": ("A", n, e)}))
            if r % 2 == 1:
                out.append(valu("v_cvt_pk_bf16_f32", v(P(b, u) + r // 2), [v(x - 1), v(x)], meta={"key": ("C", n, e)}))
    return out
def max_ops(n):
    b = n % 2
    out = []
    for u in range(2):
        x = S(b, u); T = TMP + 2 * u; T2 = T + 1
        out.append(valu("v_max3_f32", v(T), [v(x), v(x + 1), v(x + 2)]))
        for r in range(3, 15, 2):
            out.append(valu("v_max3_f32", v(T), [v(T), v(x + r), v(x + r + 1)]))
        out.append(valu("v_max_f32", v(T), [v(T), v(x + 15)]))
        out.append(valu("v_mov_b32", v(T2), [v(T)]))
        out.append(valu("v_permlane32_swap_b32", v(T2), [v(T)], wr_extra=[("v", T)], rd_extra=[("v", T2)]))
        out.append(valu("v_max_f32", v(T), [v(T), v(T2)]))
        out.append(valu("v_mul_f32", v(NEGMC + u), [s(S_NEGC), v(T)]))
    return out
def lfinal_ops():
    out = []
    for u in range(2):
        T = TMP + 4 + u
        mk = S_MA if u == 0 else S_MB
        out.append(valu("v_mov_b32", v(T), [v(L + u)]))
        out.append(valu("v_permlane32_swap_b32", v(T), [v(L + u)], wr_extra=[("v", L + u)], rd_extra=[("v", T)]))
        out.append(valu("v_add_f32", v(T), [v(T), v(L + u)]))
        out.append(valu("v_rcp_f32", v(RCP[u]), [v(T)], kind="trans"))
        out.append(valu("v_cmp_nle_f32", s(mk, 2), [v(T), s(S_THR)]))
    txt = "\n  ".join(["s_or_b64 s[%d:%d], s[%d:%d], s[%d:%d]" % (S_MA, S_MA + 1, S_MA, S_MA + 1, S_MB, S_MB + 1),
                       "s_cmp_lg_u64 s[%d:%d], 0" % (S_MA, S_MA + 1),
                       "s_cselect_b32 s%d, s%d, 0" % (S_T0, S_BIT),
                       "s_or_b32 s%d, s%d, s%d" % (S_BAD, S_BAD, S_T0)])
    out.append(raw(txt, "salu", rd=R("s", S_MA, 2) + R("s", S_MB, 2) + [("s", S_BIT), ("s", S_BAD)],
                   wr=R("s", S_MA, 2) + [("s", S_T0), ("s", S_BAD)], cost=16))
    return out
def drain_ops():
    out = []
    for t in range(4):
        for u in range(2):
            o = O(u, t)
            for e in range(2):
                for r in range(8):
                    x = o + 8 * e + r
                    out.append(valu("v_mul_f32", v(x), [v(x), v(RCP[u])]))
                for j in range(4):
                    out.append(valu("v_cvt_pk_bf16_f32", v(o + 8 * e + j), [v(o + 8 * e + 2 * j), v(o + 8 * e + 2 * j + 1)]))
                if OPT["nostore"]:
                    x = Inst("s_nop 0", "vmem", R("v", o + 8 * e, 4), [], tag=("x",), front=True, meta={"store": True, "data": R("v", o + 8 * e, 4)}); x.text = "s_nop 0"; x.meta["fake"] = 1
                    out.append(x)
                elif OPT["fakeo"]:
                    out.append(gstore(("v", o + 8 * e), 23 + 2 * u, SRD_O, 1024 * ((2 * t + e) % 4), ("ost",), extra=OX))
                else:
                    out.append(gstore(("v", o + 8 * e), VQ + u, SRD_O, 64 * t + 32 * e, ("ost",), extra=OX))
    return out
def q_loads(base, tag):
    out = []
    for u in range(2):
        for st in range(8):
            if OPT["fakeq"]:
                out.append(gload(("a", base + 32 * u + 4 * st), 23 + 2 * (st // 4), SRD_Q, 1024 * (st % 4), tag, extra=QX, soff=(47 if u else None)))
            else:
                out.append(gload(("a", base + 32 * u + 4 * st), VQ + u, SRD_Q, 32 * st, tag, extra=QX))
    return out
def dma_ops(n):
    inc = {8: "s%d" % S_INCA, 11: "s%d" % S_INCB}.get(n, "0x2000")
    rd = [("s", S_OFF), ("s", S_M0B)] + ([("s", S_INCA)] if n == 8 else []) + ([("s", S_INCB)] if n == 11 else [])
    s1 = raw("s_add_u32 s%d, s%d, %s" % (S_OFF, S_OFF, inc), "salu", rd=rd, wr=[("s", S_OFF)])
    s2 = raw("s_add_u32 m0, s%d, 0x%x" % (S_M0B, (n % 8) * 8192), "salu", rd=[("s", S_M0B)], wr=[("s", "m0")])
    pre = [s1, s2]
    if n == 8: pre.append(raw("s_mov_b32 s%d, s%d" % (SRD_KV + 2, S_NRA), "salu", rd=[("s", S_NRA)], wr=[("s", SRD_KV + 2)]))
    if n == 11: pre.append(raw("s_mov_b32 s%d, s%d" % (SRD_KV + 2, S_NRB), "salu", rd=[("s", S_NRB)], wr=[("s", SRD_KV + 2)]))
    d = []
    for k in range(4):
        x = dma(DMAV + k, SRD_KV, S_OFF, 1024 * k, ("dma", n % 16), extra=KVX)
        x.meta["n"] = n
        d.append(x)
    return pre, d

def add_slot(reg, n, g0, kind="normal", sm=True, do_dma=True, bar_tag=None, extra_seq_after_qk=(), qloads=None):
    vr = []
    for f in range(8): vr += v_reads(n - 1, f)
    vgaps = [0, 0, 1, 1, 2, 2, 3, 3, 4, 5, 6, 7, 8, 9, 10, 11]
    qk = qk_mfmas(n + 1); pv = pv_mfmas(n - 1, first=(n == 17 or n == 1))
    for o, g in zip(vr, vgaps): reg.fix_front(g0 + g, o)
    for m in qk: reg.bb(m)
    for o in extra_seq_after_qk: reg.add(o)
    if sm:
        for o in sm_ops(n): reg.add(o)
    if do_dma:
        pre, d = dma_ops(n)
        reg.fix_end(g0 + 9, pre[0]); reg.fix_end(g0 + 10, pre[1])
        for o in pre[2:]: reg.fix_end(g0 + 8, o)
        for k, o in enumerate(d): reg.fix_front(g0 + 12 + k, o)
    for m in pv: reg.bb(m)
    for st in range(8): reg.fix_front(g0 + 16 + st, k_read(n + 2, st))
    if qloads:
        for k, o in enumerate(qloads): reg.fix_front(g0 + 24 + k, o)
    add_bar(reg, g0 + 31, bar_tag if bar_tag is not None else (n + 1 - 6) % 16)
def add_bar(reg, gap, tagn):
    reg.fix_front(gap, wait(vm=("dma", tagn), lgkm="auto"))
    reg.fix_front(gap, barrier())

def book_ops_early(reg, g):
    t = "\n  ".join(["s_cmp_eq_u32 s%d, 3" % S_B, "s_cselect_b32 s%d, 0, s%d" % (S_NRB, S_NR), "s_cselect_b32 s%d, 0, 0x%x" % (SRD_Q + 2, 0 if OPT["noq"] else HEAD_Q)])
    reg.fix_end(g + 24, raw(t, "salu", rd=[("s", S_B), ("s", S_NR)], wr=[("s", S_NRB), ("s", SRD_Q + 2)], cost=12))
    t = "\n  ".join(["s_cmp_lt_u32 s%d, 2" % S_WAVE, "s_cselect_b32 s%d, s%d, s%d" % (S_NRA, S_NRB, S_NR)])
    reg.fix_end(g + 25, raw(t, "salu", rd=[("s", S_WAVE), ("s", S_NRB), ("s", S_NR)], wr=[("s", S_NRA)], cost=8))
def book_ops_late(reg, g):
    t = "\n  ".join(["s_add_u32 s%d, s%d, 0x%x" % (SRD_Q, SRD_Q, BLK_Q), "s_addc_u32 s%d, s%d, 0" % (SRD_Q + 1, SRD_Q + 1)])
    reg.fix_end(g + 24, raw(t, "salu", rd=R("s", SRD_Q, 2), wr=R("s", SRD_Q, 2), cost=8))

def build_loop():
    reg = Region("loop")
    qn = q_loads(QN, ("qn",))
    for n in range(2, 14):
        g0 = len(reg.backbone)
        ql = qn[4 * (n - 3): 4 * (n - 3) + 4] if 3 <= n <= 6 else None
        add_slot(reg, n, g0, qloads=ql)
        if n == 2: book_ops_early(reg, g0)
        if n == 7: book_ops_late(reg, g0)
    g0 = len(reg.backbone)
    cp = [valu("v_accvgpr_mov_b32", a(i), [a(QN + i)]) for i in [32 * u + 4 * st + k for st in range(8) for u in range(2) for k in range(4)]]
    add_slot(reg, 14, g0, extra_seq_after_qk=[], bar_tag=10)
    for o in cp: reg.add(o)
    exit_gap = len(reg.backbone) - 1
    g0 = len(reg.backbone)
    n = 15
    vr = []
    for f in range(8): vr += v_reads(14, f)
    vgaps = [0, 0, 1, 1, 2, 2, 3, 3, 4, 5, 6, 7, 8, 9, 10, 11]
    for o, g in zip(vr, vgaps): reg.fix_front(g0 + g, o)
    for m in qk_mfmas(16): reg.bb(m)
    for o in sm_ops(15): reg.add(o)
    pre, d = dma_ops(15)
    reg.fix_end(g0 + 9, pre[0]); reg.fix_end(g0 + 10, pre[1])
    for k, o in enumerate(d): reg.fix_front(g0 + 12 + k, o)
    pv = pv_mfmas(14)
    for j, m in enumerate(pv):
        reg.bb(m)
        if j % 2 == 1:
            for o in v_reads(15, j // 2): reg.fix_front(g0 + 16 + j, o)
    mx = max_ops(16)
    for o in mx: reg.add(o)
    add_bar(reg, g0 + 31, 10)
    g0 = len(reg.backbone)
    for o in lfinal_ops(): reg.add(o)
    for st in range(8): reg.fix_front(g0 + st, k_read(17, st))
    for m in pv_mfmas(15): reg.bb(m)
    for o in sm_ops(16, first=True): reg.add(o)
    pre, d = dma_ops(16)
    reg.fix_end(g0 + 9, pre[0]); reg.fix_end(g0 + 10, pre[1])
    for k, o in enumerate(d): reg.fix_front(g0 + 12 + k, o)
    qk = qk_mfmas(17)
    for j, m in enumerate(qk):
        reg.bb(m)
        if j % 2 == 1: reg.fix_front(g0 + 16 + j, k_read(18, j // 2))
    for o in drain_ops(): reg.add(o)
    add_bar(reg, g0 + 31, 11)
    g0 = len(reg.backbone)
    add_slot(reg, 17, g0)
    t = "\n  ".join(["s_add_u32 s%d, s%d, 1" % (S_B, S_B), "s_lshl_b32 s%d, s%d, 1" % (S_BIT, S_BIT)])
    reg.fix_end(g0 + 28, raw(t, "salu", rd=[("s", S_B), ("s", S_BIT)], wr=[("s", S_B), ("s", S_BIT)], cost=8))
    t = "\n  ".join(["s_add_u32 s%d, s%d, 0x%x" % (SRD_O, SRD_O, BLK_Q), "s_addc_u32 s%d, s%d, 0" % (SRD_O + 1, SRD_O + 1)])
    reg.fix_end(g0 + 29, raw(t, "salu", rd=R("s", SRD_O, 2), wr=R("s", SRD_O, 2), cost=8))
    return reg, exit_gap

def build_prologue():
    reg = Region("prologue")
    for st in range(8):
        o = k_read(0, st); reg.pre.append(o); reg.seq.append(o)
    g0 = 0
    for j, m in enumerate(qk_mfmas(0)):
        reg.bb(m)
        if j % 2 == 1: reg.fix_front(g0 + j, k_read(1, j // 2))
    add_bar(reg, g0 + 15, 10)
    g0 = len(reg.backbone)
    for o in max_ops(0): reg.add(o)
    qk = qk_mfmas(1)
    pre, d = dma_ops(0)
    for j, m in enumerate(qk):
        reg.bb(m)
        if j % 2 == 1: reg.fix_front(g0 + j, k_read(2, j // 2))
    reg.fix_end(g0 + 1, pre[0]); reg.fix_end(g0 + 2, pre[1])
    for k, o in enumerate(d): reg.fix_front(g0 + 4 + 2 * k, o)
    for o in sm_ops(0, first=True): reg.add(o)
    add_bar(reg, g0 + 15, 11)
    g0 = len(reg.backbone)
    add_slot(reg, 1, g0)
    return reg

def build_tail(done_keys):
    reg = Region("tail")
    for f in range(8):
        for o in v_reads(14, f): reg.pre.append(o); reg.seq.append(o)
    fill = Inst("", "comment", meta={"fill": 140}); reg.pre.append(fill)
    for o in sm_ops(15): reg.add(o)
    for j, m in enumerate(pv_mfmas(14)):
        reg.bb(m)
        if j % 2 == 1:
            for o in v_reads(15, j // 2): reg.fix_front(j, o)
    for o in lfinal_ops(): reg.add(o)
    for m in pv_mfmas(15): reg.bb(m)
    for o in drain_ops(): reg.add(o)
    return reg

import struct
def fbits(x): return struct.unpack("<I", struct.pack("<f", x))[0]
C_SCALE = (128 ** -0.5) * 1.4426950408889634

def T(lines):
    out = []
    for l in lines.strip("\n").split("\n"):
        l = l.strip()
        if not l: continue
        if l.endswith(":"): out.append(label(l[:-1]))
        elif l.startswith(";"): out.append(comment(l[1:].strip()))
        else: out.append(raw(l, "salu"))
    return out

def stamp(k, real=False):
    if not OPT["stamps"]: return []
    return [raw("%s s[%d:%d]" % ("s_memrealtime" if real else "s_memtime", S_ST + 2 * k, S_ST + 2 * k + 1), "salu", cost=4)]

def setup_text():
    t = f"""
  s_cmp_ge_u32 s2, 256
  s_cbranch_scc1 L_end
  s_load_dwordx8 s[{S_PTR}:{S_PTR+7}], s[0:1], 0
  s_load_dwordx2 s[{S_WS}:{S_WS+1}], s[0:1], 40
  v_lshrrev_b32 v31, 6, v0
  v_and_b32 v30, 63, v0
  s_and_b32 s{S_T0}, s2, 7
  v_readfirstlane_b32 s{S_WAVE}, v31
  s_lshr_b32 s{S_T1}, s2, 3
  s_and_b32 s{S_HALF}, s{S_T1}, 1
  s_lshr_b32 s{S_T1}, s{S_T1}, 1
  s_lshl_b32 s{S_T1}, s{S_T1}, 3
  s_add_u32 s{S_HEAD0}, s{S_T1}, s{S_T0}
  s_mov_b32 s{S_C}, 0x{fbits(C_SCALE):x}
  s_mov_b32 s{S_NEGC}, 0x{fbits(-C_SCALE):x}
  s_mov_b32 s{S_THR}, 0x{fbits(2.0 ** OPT['thr_log2']):x}
  s_mov_b32 s{S_B}, 0
  s_mov_b32 s{S_BAD}, 0
  s_mov_b32 s{S_BIT}, 1
  v_and_b32 v29, 31, v30
  v_lshrrev_b32 v28, 5, v30
  s_lshl_b32 s{S_T0}, s{S_HALF}, 8
  s_lshl_b32 s{S_T1}, s{S_WAVE}, 6
  s_add_u32 s{S_T0}, s{S_T0}, s{S_T1}
  v_add_u32 v27, s{S_T0}, v29
  v_lshlrev_b32 v27, 8, v27
  v_lshl_add_u32 v{VQ}, v28, 4, v27
  v_add_u32 v{VQ+1}, 0x2000, v{VQ}
  s_and_b32 s{S_T0}, s{S_WAVE}, 1
  s_cmp_lt_u32 s{S_WAVE}, 2
  s_cselect_b32 s{S_T1}, 0, 2
  s_cselect_b32 s29, 4, 0
  s_cselect_b32 s{S_M0B}, 0, 0x{VRING:x}
  s_mov_b32 s47, 0x2000
  s_cselect_b32 s{S_INCA}, 0x{BIG:x}, s47
  s_cselect_b32 s{S_INCB}, s47, 0x{BIG:x}
  s_lshl_b32 s47, s{S_T0}, 12
  s_add_u32 s{S_M0B}, s{S_M0B}, s47
  v_lshrrev_b32 v27, 4, v30
  v_and_b32 v26, 15, v30
  v_lshlrev_b32 v25, s{S_T1}, v27
  v_lshlrev_b32 v24, 8, v27
  v_add_u32 v24, s47, v24
  v_xor_b32 v23, v26, v25
  v_lshl_add_u32 v{DMAV}, v23, 4, v24
  v_add_u32 v25, s29, v25
  v_xor_b32 v23, v26, v25
  v_lshl_add_u32 v{DMAV+1}, v23, 4, v24
  v_add_u32 v25, s29, v25
  v_xor_b32 v23, v26, v25
  v_lshl_add_u32 v{DMAV+2}, v23, 4, v24
  v_add_u32 v25, s29, v25
  v_xor_b32 v23, v26, v25
  v_lshl_add_u32 v{DMAV+3}, v23, 4, v24
  s_waitcnt lgkmcnt(0)
  ; SRDs
  s_mul_i32 s{S_T0}, s{S_HEAD0}, 0x{HEAD_Q:x}
  s_add_u32 s{SRD_Q}, s{S_PTR}, s{S_T0}
  s_addc_u32 s{SRD_Q+1}, s{S_PTR+1}, 0
  s_mov_b32 s{SRD_Q+2}, 0x{HEAD_Q:x}
  s_mov_b32 s{SRD_Q+3}, 0x20000
  s_add_u32 s{SRD_O}, s{S_PTR+6}, s{S_T0}
  s_addc_u32 s{SRD_O+1}, s{S_PTR+7}, 0
  s_mov_b32 s{SRD_O+2}, 0x{HEAD_Q:x}
  s_mov_b32 s{SRD_O+3}, 0x20000
  s_cmp_lt_u32 s{S_WAVE}, 2
  s_cselect_b32 s{SRD_KV}, s{S_PTR+2}, s{S_PTR+4}
  s_cselect_b32 s{SRD_KV+1}, s{S_PTR+3}, s{S_PTR+5}
  s_lshl_b32 s{S_T0}, s{S_HEAD0}, 17
  s_add_u32 s{SRD_KV}, s{SRD_KV}, s{S_T0}
  s_addc_u32 s{SRD_KV+1}, s{SRD_KV+1}, 0
  s_sub_u32 s{S_NR}, 0x4000000, s{S_T0}
  s_mov_b32 s{SRD_KV+2}, s{S_NR}
  s_mov_b32 s{SRD_KV+3}, 0x20000
  s_mov_b32 s{S_OFF}, 0
"""
    return T(t)

def addr_consts_text():
    t = f"""
  v_and_b32 v27, 15, v29
  v_xor_b32 v27, v27, v28
  v_lshlrev_b32 v26, 8, v29
  v_lshl_add_u32 v{KADDR}, v27, 4, v26
"""
    for st in range(1, 8):
        t += f"  v_xor_b32 v{KADDR+st}, {32*st}, v{KADDR}\n"
    t += f"""
  v_bfe_u32 v27, v30, 2, 2
  v_lshl_add_u32 v26, v28, 2, v27
  v_lshlrev_b32 v26, 8, v26
  v_bfe_u32 v25, v30, 4, 1
  v_lshl_add_u32 v26, v25, 5, v26
  v_and_b32 v25, 1, v30
  v_lshlrev_b32 v25, 1, v25
  v_bfe_u32 v24, v30, 1, 1
  v_add_u32 v25, v25, v24
  v_lshl_add_u32 v26, v25, 3, v26
  v_add_u32 v26, 0x{VRING:x}, v26
"""
    for tt in range(4):
        t += f"  v_xor_b32 v25, {tt}, v27\n  v_lshl_add_u32 v{VADDR+tt}, v25, 6, v26\n"
    return T(t)

def first_loads(role):
    out = []
    ql = q_loads(0, ("q0",))
    def tile(j):
        pos = j % 8 if role == "K" else (j + 3) % 8
        vs = (j - 8) % 16 if role == "K" else (j - 5) % 16
        o = []
        if j > 0: o.append(raw("s_add_u32 s%d, s%d, 0x2000" % (S_OFF, S_OFF), "salu"))
        o.append(raw("s_add_u32 m0, s%d, 0x%x" % (S_M0B, pos * 8192), "salu", wr=[("s", "m0")]))
        for k in range(4):
            x = dma(DMAV + k, SRD_KV, S_OFF, 1024 * k, ("dma", vs), extra=KVX)
            x.meta["ring"] = (role, j)
            o.append(x)
        return o
    if role == "K":
        out += tile(0) + ql
        for j in range(1, 8): out += tile(j)
        out.append(wait(vm=[("q0",), ("dma", (1 - 8) % 16)]))
    else:
        out += ql
        for j in range(0, 5): out += tile(j)
        out.append(wait(vm=("q0",)))
    return out

def slow_path():
    o = []
    A = o.append
    def X(t): o.extend(T(t))
    MOLD = (TMP, TMP + 1); ALPHA = (RCP[0], RCP[1]); T1 = (TMP + 2, TMP + 3); T2 = (TMP + 4, TMP + 5)
    X(f"""
L_slow:
  s_mov_b32 s{S_B}, 0
L_sb:
  s_lshr_b32 s{S_T0}, s{S_BAD}, s{S_B}
  s_and_b32 s{S_T0}, s{S_T0}, 1
  s_cmp_eq_u32 s{S_T0}, 0
  s_cbranch_scc1 L_sb_next
  s_lshl_b32 s{S_T0}, s{S_B}, 7
  s_add_u32 s{S_T0}, s{S_T0}, s{S_HEAD0}
  s_mul_i32 s{S_T1}, s{S_T0}, 0x{HEAD_Q:x}
  s_add_u32 s{SRD_Q}, s{S_PTR}, s{S_T1}
  s_addc_u32 s{SRD_Q+1}, s{S_PTR+1}, 0
  s_mov_b32 s{SRD_Q+2}, 0x{HEAD_Q:x}
  s_add_u32 s{SRD_O}, s{S_PTR+6}, s{S_T1}
  s_addc_u32 s{SRD_O+1}, s{S_PTR+7}, 0
  s_mov_b32 s{SRD_O+2}, 0x{HEAD_Q:x}
  s_cmp_lt_u32 s{S_WAVE}, 2
  s_cselect_b32 s{SRD_KV}, s{S_PTR+2}, s{S_PTR+4}
  s_cselect_b32 s{SRD_KV+1}, s{S_PTR+3}, s{S_PTR+5}
  s_lshl_b32 s{S_T0}, s{S_T0}, 17
  s_add_u32 s{SRD_KV}, s{SRD_KV}, s{S_T0}
  s_addc_u32 s{SRD_KV+1}, s{SRD_KV+1}, 0
  s_mov_b32 s{SRD_KV+2}, 0x{HEAD_KV:x}
  s_waitcnt vmcnt(0) lgkmcnt(0)
  s_barrier
""")
    for x in q_loads(0, ("sq",)): A(x)
    for r in range(128): A(valu("v_mov_b32", v(128 + r), ["0"]))
    for u in range(2):
        A(valu("v_mov_b32", v(L + u), ["0"]))
        A(valu("v_mov_b32", v(MOLD[u]), ["0xff800000"]))
    X(f"""
  s_mov_b32 s{S_OFF}, 0
L_st:
  s_mov_b32 m0, s{S_M0B}
  s_nop 0
""")
    for k in range(4): A(dma(DMAV + k, SRD_KV, S_OFF, 1024 * k, ("sd",)))
    X("""
  s_waitcnt vmcnt(0)
  s_barrier
""")
    for st in range(8): A(ds_read(("a", KF(st)), 4, KADDR + st, 0))
    for f in range(8):
        kk, t = f // 4, f % 4
        for jj in range(2):
            A(ds_read(("a", VF(kk, t) + 2 * jj), 2, VADDR + t, (16 * kk + 8 * jj) * 256, tr=True))
    X("  s_waitcnt lgkmcnt(0)")
    for m in qk_mfmas(0): A(m)
    for u in range(2):
        x = S(0, u); t1 = T1[u]; t2 = T2[u]
        A(valu("v_max3_f32", v(t1), [v(x), v(x + 1), v(x + 2)]))
        for r in range(3, 15, 2): A(valu("v_max3_f32", v(t1), [v(t1), v(x + r), v(x + r + 1)]))
        A(valu("v_max3_f32", v(t1), [v(t1), v(x + 15), v(MOLD[u])]))
        A(valu("v_mov_b32", v(t2), [v(t1)]))
        A(valu("v_permlane32_swap_b32", v(t2), [v(t1)], wr_extra=[("v", t1)], rd_extra=[("v", t2)]))
        A(valu("v_max_f32", v(t1), [v(t1), v(t2)]))
        A(valu("v_sub_f32", v(t2), [v(MOLD[u]), v(t1)]))
        A(valu("v_mul_f32", v(t2), [s(S_C), v(t2)]))
        A(valu("v_exp_f32", v(ALPHA[u]), [v(t2)], kind="trans"))
        A(valu("v_mov_b32", v(MOLD[u]), [v(t1)]))
        A(valu("v_mul_f32", v(NEGMC + u), [s(S_NEGC), v(t1)]))
        A(valu("v_mul_f32", v(L + u), [v(L + u), v(ALPHA[u])]))
        for r in range(16): A(valu("v_fma_f32", v(x + r), [v(x + r), s(S_C), v(NEGMC + u)]))
        for r in range(16): A(valu("v_exp_f32", v(x + r), [v(x + r)], kind="trans"))
        for r in range(16): A(valu("v_add_f32", v(L + u), [v(L + u), v(x + r)]))
        for j in range(8): A(valu("v_cvt_pk_bf16_f32", v(P(0, u) + j), [v(x + 2 * j), v(x + 2 * j + 1)]))
        for t in range(4):
            for r in range(16): A(valu("v_mul_f32", v(O(u, t) + r), [v(O(u, t) + r), v(ALPHA[u])]))
    for m in pv_mfmas(0): A(m)
    X(f"""
  s_barrier
  s_add_u32 s{S_OFF}, s{S_OFF}, 0x2000
  s_cmp_lt_u32 s{S_OFF}, 0x20000
  s_cbranch_scc1 L_st
""")
    for u in range(2):
        Tm = T1[u]
        A(valu("v_mov_b32", v(Tm), [v(L + u)]))
        A(valu("v_permlane32_swap_b32", v(Tm), [v(L + u)], wr_extra=[("v", L + u)], rd_extra=[("v", Tm)]))
        A(valu("v_add_f32", v(Tm), [v(Tm), v(L + u)]))
        A(valu("v_rcp_f32", v(RCP[u]), [v(Tm)], kind="trans"))
    for x in drain_ops(): A(x)
    X(f"""
L_sb_next:
  s_add_u32 s{S_B}, s{S_B}, 1
  s_cmp_lt_u32 s{S_B}, 4
  s_cbranch_scc1 L_sb
""")
    return o

def end_text():
    return T(f"""
  v_mov_b32 v26, s{S_BAD}
  s_lshl_b32 s{S_T0}, s{S_WAVE}, 2
  s_add_u32 s{S_T0}, s{S_T0}, 0x{FLAGS:x}
  v_mov_b32 v27, s{S_T0}
  v_mov_b32 v28, 0x{FLAGS:x}
  ds_write_b32 v27, v26
  s_waitcnt lgkmcnt(0)
  s_barrier
  ds_read_b128 v[32:35], v28
  s_waitcnt lgkmcnt(0)
  v_or_b32 v32, v32, v33
  v_or_b32 v34, v34, v35
  v_or_b32 v32, v32, v34
  s_nop 1
  v_readfirstlane_b32 s{S_BAD}, v32
  s_nop 3
  s_cmp_eq_u32 s{S_BAD}, 0
  s_cbranch_scc1 L_fin
""")

def stamps_out(n):
    if not OPT["stamps"]: return []
    t = "  s_waitcnt lgkmcnt(0)\n"
    t += f"  s_lshl_b32 s{S_T0}, s2, 2\n  s_add_u32 s{S_T0}, s{S_T0}, s{S_WAVE}\n  s_lshl_b32 s{S_T0}, s{S_T0}, 6\n"
    t += f"  s_mov_b32 s4, s{S_WS}\n  s_mov_b32 s5, s{S_WS+1}\n  s_mov_b32 s6, 0x100000\n  s_mov_b32 s7, 0x20000\n"
    t += f"  v_mov_b32 v27, s{S_T0}\n  s_mov_b64 exec, 1\n"
    for k in range(n):
        t += f"  v_mov_b32 v26, s{S_ST + 2 * k}\n  buffer_store_dword v26, v27, s[4:7], 0 offen offset:{4*k}\n  s_nop 1\n"
    t += "  s_mov_b64 exec, -1\n"
    return T(t)

def main():
    pro = build_prologue()
    loop, exit_gap = build_loop()
    p_end = plan_lgkm_waits(pro); assert not p_end, p_end
    l_end = plan_lgkm_waits(loop); assert not l_end, l_end
    pro_out, pinfo = schedule(pro)
    loop_out, linfo = schedule(loop, cut={exit_gap: 1})
    pos, keys = linfo["cuts"][exit_gap]
    tail = build_tail(keys)
    plan_lgkm_waits(tail)
    tail_out, tinfo = schedule(tail, skip_keys=set(k for k in keys if k[1] == 15))
    exit_m = raw("s_cmp_eq_u32 s%d, 3\n  s_cbranch_scc1 L_tail" % S_B, "branch", cost=8)
    loopA = loop_out[:pos] + [exit_m]; loopB = loop_out[pos:]
    back = raw("s_branch L_loop", "branch")
    sys.stderr.write("prologue est %d cyc, loop est %d cyc (%d mfma), tail est %d\n" % (pinfo["t"], linfo["t"], len(loop.backbone), tinfo["t"]))
    mt = linfo["mt"] + [linfo["t"]]
    sys.stderr.write("loop slot cycles: %s\n" % " ".join("%d:%d" % (i + 2, mt[min(32 * (i + 1), len(mt) - 1)] - mt[32 * i]) for i in range(16)))
    sys.stderr.write("loop overflow gaps: %s\n" % (" ".join("%d:%d" % x for x in linfo["overflow"])))

    setup = setup_text()
    consts = addr_consts_text()
    fK = first_loads("K"); fV = first_loads("V")
    qadv = T(f"  s_add_u32 s{SRD_Q}, s{SRD_Q}, 0x{BLK_Q:x}\n  s_addc_u32 s{SRD_Q+1}, s{SRD_Q+1}, 0")
    bar0 = [barrier()]
    st = stamp
    tail_pre = [label("L_tail")] + st(5)
    slow = slow_path()
    def trace(first):
        tr = [(o, 0) for o in first[:-1] + consts + [first[-1]] + bar0 + pro_out]
        tr += [(o, 0) for o in loopA + loopB]
        tr += [(o, 1) for o in loopA + loopB]
        tr += [(o, 2) for o in loopA]
        tr += [(o, 2) for o in tail_out]
        return tr
    trK = trace(fK); trV = trace(fV)
    resolve_waits([[o for o, b in trK], [o for o, b in trV]])
    need = fix_hazards([[o for o, b in trK], [o for o, b in trV], slow + slow])
    errs = check_trace(trK, "K", "K") + check_trace(trV, "V", "V")
    for e in errs[:40]: sys.stderr.write("CHECK: " + e + "\n")
    if errs: raise SystemExit("trace check failed (%d)" % len(errs))
    nn = sum(need.values())
    sys.stderr.write("hazard nops: %d sites, %d states\n" % (len(need), nn))
    N = lambda l: insert_nops(l, need)
    prog = []
    prog += st(0) + st(6, True) + setup
    prog += T(f"  s_cmp_lt_u32 s{S_WAVE}, 2\n  s_cbranch_scc0 L_roleV")
    prog += N(fK[:-1]) + T("  s_branch L_rolejoin0")
    prog += [label("L_roleV")] + N(fV[:-1]) + [label("L_rolejoin0")]
    prog += consts + qadv
    prog += T(f"  s_cmp_lt_u32 s{S_WAVE}, 2\n  s_cbranch_scc0 L_roleV2") + [fK[-1]] + T("  s_branch L_rolejoin1")
    prog += [label("L_roleV2"), fV[-1], label("L_rolejoin1")]
    prog += bar0 + st(1)
    prog += N(pro_out) + st(2)
    prog += [raw(".p2align 6", "comment"), label("L_loop")]
    prog += N(loopA) + N(loopB) + st(3) + [back]
    prog += tail_pre + N(tail_out) + st(4)
    prog += end_text()
    prog += N(slow)
    prog += [label("L_fin")] + st(8) + st(7, True) + stamps_out(9) + [label("L_end"), raw("s_endpgm")]
    hdr = open("cdna_kernels/%s.s.ref" % NAME).read().split("\n")
    head = [l for l in hdr[:9]]
    txt = "\n".join(head) + "\n"
    txt += "; @launch grid=(256,1,1) block=(256,1,1) lds=%d\n" % LDS_BYTES
    txt += '.amdgcn_target "amdgcn-amd-amdhsa--gfx950"\n.text\n.globl %s_kernel\n.p2align 8\n.type %s_kernel,@function\n%s_kernel:\n' % (NAME, NAME, NAME)
    for o in prog:
        if o.kind == "label": txt += o.text + "\n"
        elif o.kind == "comment":
            if o.text.startswith(".p2align"): txt += o.text + "\n"
            elif o.text: txt += "  " + o.text + "\n"
        else: txt += "  " + o.text + "\n"
    txt += """.section .rodata,"a"
.p2align 6
.amdhsa_kernel %s_kernel
  .amdhsa_next_free_vgpr 448
  .amdhsa_next_free_sgpr 96
  .amdhsa_accum_offset 256
  .amdhsa_group_segment_fixed_size 0
  .amdhsa_kernarg_size 48
  .amdhsa_user_sgpr_count 2
  .amdhsa_user_sgpr_kernarg_segment_ptr 1
  .amdhsa_system_sgpr_workgroup_id_x 1
  .amdhsa_float_denorm_mode_32 3
.end_amdhsa_kernel
""" % NAME
    open(sys.argv[1], "w").write(txt)
    n_inst = sum(1 for o in prog if o.kind not in ("label", "comment"))
    sys.stderr.write("total insts (macro-level) %d\n" % n_inst)

main()
```
